```python
import torch

def _softmax(x, axis=-1):
    return torch.softmax(x, dim=axis)
def _gelu(x):
    return torch.nn.functional.gelu(x, approximate="tanh")
def _silu(x):
    return torch.nn.functional.silu(x)
def _sigmoid(x):
    return torch.sigmoid(x)
def _layernorm(x, axis=-1, eps=1e-5):
    m = x.mean(dim=axis, keepdim=True)
    v = x.var(dim=axis, keepdim=True, unbiased=False)
    return (x - m) / torch.sqrt(v + eps)
def _scatter_add(tgt, idx, src, axis=0):
    return tgt.clone().index_add_(axis, idx, src)
def _segment_sum(src, seg, n):
    out = torch.zeros((n,) + src.shape[1:], dtype=src.dtype)
    return out.index_add_(0, seg, src)
def _pad(x, pw):
    flat = tuple(v for pair in reversed(pw) for v in pair)
    return torch.nn.functional.pad(x, flat)

kernel_name = 'standalone__instancenorm__sampling'

def setup_inputs():

    _w = (lambda a: (lambda t: t.to(torch.bfloat16) if t.is_floating_point() else t)(torch.as_tensor(a)))
    B, C, H, W = 32, 512, 16, 32
    return {
        "x": _w(abs((lambda *s: torch.randn(*s, dtype=torch.bfloat16) * 0.05)(B, C, H, W))),
        "g": _w((lambda *s: torch.randn(*s, dtype=torch.bfloat16) * 0.05)(C) + 1.0),
        "b": _w((lambda *s: torch.randn(*s, dtype=torch.bfloat16) * 0.4)(C)),
    }

def reference(x, g, b):
    mu = x.mean(axis=(-2, -1), keepdims=True)
    var = ((x - mu) ** 2).mean(axis=(-2, -1), keepdims=True)
    xhat = (x - mu) / torch.sqrt(var + 1e-5)
    return xhat * g.reshape(1, -1, 1, 1) + b.reshape(1, -1, 1, 1)
```

```python
import sys, argparse, math

HDR = """; Kernarg layout for this problem (48 bytes, ptrs only, base s[0:1]):
"""

def gen(block=1024, late=9, prio=0, ld="nt", st="nt", st2="", n2=0, xmap=1, touch=0, gbfirst=0, dot=1, lds=0, align=12, skip=0, skippar=1, trim=1):
    waves = block // 64
    rows_per_block = 4 * waves
    grid = 16384 // rows_per_block
    lg = int(math.log2(rows_per_block))
    L = []
    A = L.append
    A(HDR + f"; @launch grid=({grid},1,1) block=({block},1,1) lds={lds}")
    A('.amdgcn_target "amdgcn-amd-amdhsa--gfx950"')
    A(".text")
    A(".globl standalone__instancenorm__sampling_kernel")
    if align != 8:
        A(f".p2align {align}")
    A(".p2align 8")
    A(".type standalone__instancenorm__sampling_kernel,@function")
    A("standalone__instancenorm__sampling_kernel:")
    A("    s_load_dwordx8 s[4:11], s[0:1], 0          ; s[4:5]=x s[6:7]=g s[8:9]=b s[10:11]=out")
    if prio:
        A(f"    s_setprio {prio}")
    if xmap >= 10:
        A("    s_lshr_b32 s3, s2, 3")
        A(f"    s_cmp_ge_u32 s3, {grid//8}")
        A("    s_cbranch_scc1 L_end")
    elif xmap == 1:
        A("    s_lshr_b32 s3, s2, 3")
        if grid // 8 <= 64:
            A(f"    s_cmp_ge_u32 s3, {grid//8}")
        else:
            A(f"    s_cmpk_ge_u32 s3, {grid//8}")
        A("    s_cbranch_scc1 L_end")
        A("    s_and_b32 s12, s2, 7")
        A(f"    s_lshl_b32 s12, s12, {11-lg}")
        A("    s_or_b32 s3, s3, s12")
    else:
        A(f"    s_cmpk_ge_u32 s2, {grid}")
        A("    s_cbranch_scc1 L_end")
        A("    s_mov_b32 s3, s2")
    if xmap >= 100:
        A("    v_readfirstlane_b32 s14, v0")
        A("    s_lshr_b32 s15, s14, 6                     ; w")
        A("    s_and_b32 s13, s15, 1                      ; a12")
        A("    s_lshr_b32 s12, s15, 1")
        A("    s_lshl_b32 s12, s12, 2                     ; a14-16")
        A("    s_or_b32 s13, s13, s12")
        A("    s_lshr_b32 s12, s2, 2                      ; side")
        if xmap == 101:
            A("    s_lshr_b32 s16, s15, 1")
            A("    s_lshr_b32 s17, s15, 2")
            A("    s_and_b32 s16, s16, s17")
            A("    s_xor_b32 s12, s12, s16")
        A("    s_lshr_b32 s15, s3, 4                      ; a21")
        A("    s_xor_b32 s12, s12, s15")
        A("    s_and_b32 s12, s12, 1")
        A("    s_lshl_b32 s12, s12, 1")
        A("    s_or_b32 s13, s13, s12")
        A("    s_lshl_b32 s3, s3, 5")
        A("    s_or_b32 s3, s3, s13")
        A("    s_and_b32 s12, s2, 3")
        A("    s_lshl_b32 s12, s12, 10")
        A("    s_or_b32 s3, s3, s12")
        A("    v_bfe_u32 v2, v0, 4, 2")
        A("    v_lshl_add_u32 v2, s3, 2, v2")
    elif xmap >= 10:
        nlo = (xmap // 10) - 1
        swz = xmap % 10
        A("    v_readfirstlane_b32 s14, v0")
        A("    s_lshr_b32 s15, s14, 6                     ; w")
        if swz == 1:
            A("    s_xor_b32 s15, s15, s3")
            A("    s_and_b32 s15, s15, 15")
        if swz == 2:
            A("    s_xor_b32 s3, s3, s15")
        if swz == 3:
            A("    s_lshr_b32 s13, s3, 1")
            A("    s_xor_b32 s15, s15, s13")
        if swz == 4:
            A("    s_lshr_b32 s13, s2, 1")
            A("    s_and_b32 s13, s13, 2")
            A("    s_xor_b32 s15, s15, s13")
        if swz == 5:
            A("    s_lshl_b32 s13, s2, 1")
            A("    s_and_b32 s13, s13, 2")
            A("    s_xor_b32 s15, s15, s13")
        A(f"    s_and_b32 s13, s15, {(1<<nlo)-1}")
        A(f"    s_lshl_b32 s3, s3, {nlo}")
        A("    s_or_b32 s3, s3, s13")
        A(f"    s_lshr_b32 s15, s15, {nlo}")
        A(f"    s_lshl_b32 s15, s15, {nlo+5}")
        A("    s_or_b32 s3, s3, s15")
        A("    s_and_b32 s12, s2, 7")
        A("    s_lshl_b32 s12, s12, 9")
        A("    s_or_b32 s3, s3, s12")
        A("    v_bfe_u32 v2, v0, 4, 2")
        A("    v_lshl_add_u32 v2, s3, 2, v2")
    else:
        A("    v_lshrrev_b32 v2, 4, v0")
        A(f"    v_lshl_add_u32 v2, s3, {lg}, v2")
    A("    v_and_b32 v1, 15, v0")
    A("    v_lshlrev_b32 v1, 4, v1")
    A("    v_lshl_add_u32 v1, v2, 10, v1")
    def setup1():
        A("    v_and_b32 v2, 0x1ff, v2                    ; channel")
        A("    v_lshlrev_b32 v2, 1, v2")
        A("    v_mov_b64 v[4:5], 0")
    def setup2():
        if late or n2:
            A("    v_readfirstlane_b32 s14, v0")
        if dot:
            A("    v_mov_b64 v[56:57], 0")
            A("    s_mov_b32 s13, 0x3f803f80                  ; bf16 {1.0, 1.0}")
        A("    s_mov_b32 s12, 0xffff0000")
    if not trim or gbfirst: setup1()
    if not trim or skip: setup2()
    if skip:
        A("    s_and_b32 s15, s2, 1")
        A(f"    s_cmp_eq_u32 s15, {skippar}")
        A(f"    s_movk_i32 s15, {(waves-skip)*64}")
        A("    s_cselect_b32 s15, s15, -1")
        A("    s_cmp_ge_u32 s14, s15")
        A("    s_cbranch_scc1 L_end")
    A("    s_waitcnt lgkmcnt(0)")
    order = []
    def gb():
        A("    global_load_short_d16_hi v4, v2, s[6:7]")
        A("    global_load_short_d16_hi v5, v2, s[8:9]")
        order.extend(["g", "b"])
    if gbfirst: gb()
    for k in range(4):
        A(f"    global_load_dwordx4 v[{8+4*k}:{11+4*k}], v1, s[4:5] offset:{256*k} {ld}")
        order.append(k)
    if trim and not gbfirst: setup1()
    if not gbfirst: gb()
    if trim and not skip: setup2()
    if touch:
        A(f"    s_lshl_b32 s3, s3, {lg+10}")
        A("    v_mov_b32 v3, s3")
        A("    global_load_dword v3, v3, s[10:11]")
        order.append("t")
    if prio:
        A("    s_setprio 0")
    if late:
        A(f"    s_cmpk_lt_u32 s14, {(waves-late)*64}")
        A("    s_cbranch_scc1 L_early")
        A("    s_barrier")
        A("L_early:")
    def wait(tag):
        A(f"    s_waitcnt vmcnt({len(order)-1-order.index(tag)})")
    f = 24; s = 56
    def unp(k, q):
        r = 8 + 4 * k + q; o = f + 8 * k + 2 * q
        return [f"    v_lshlrev_b32 v{o}, 16, v{r}", f"    v_and_b32 v{o+1}, s12, v{r}"]
    dpp = lambda reg, ror: f"    v_add_f32_dpp v{reg}, v{reg}, v{reg} row_ror:{ror} row_mask:0xf bank_mask:0xf"
    if dot:
        for k in range(4):
            wait(k)
            for q in range(4):
                A(f"    v_dot2c_f32_bf16 v{s+(q&1)}, s13, v{8+4*k+q}")
            if k < 3:
                for q in range(4):
                    L.extend(unp(k, q))
        fill = sum([unp(3, q) for q in range(4)], [])
        L.extend(fill[0:2]); A("    s_nop 0")
        A(f"    v_add_f32 v{s}, v{s}, v{s+1}")
        L.extend(fill[2:4]); A(dpp(s, 8))
        L.extend(fill[4:6]); A(dpp(s, 4))
        L.extend(fill[6:8]); A(dpp(s, 2))
        A("    s_nop 1"); A(dpp(s, 1))
    else:
        for k in range(4):
            wait(k)
            for q in range(4):
                L.extend(unp(k, q))
            o = f + 8 * k
            A(f"    v_pk_add_f32 v[{s+2*k}:{s+2*k+1}], v[{o}:{o+1}], v[{o+2}:{o+3}]")
            A(f"    v_pk_add_f32 v[{6}:{7}], v[{o+4}:{o+5}], v[{o+6}:{o+7}]")
            A(f"    v_pk_add_f32 v[{s+2*k}:{s+2*k+1}], v[{s+2*k}:{s+2*k+1}], v[{6}:{7}]")
        A(f"    v_pk_add_f32 v[{s}:{s+1}], v[{s}:{s+1}], v[{s+2}:{s+3}]")
        A(f"    v_pk_add_f32 v[{s+4}:{s+5}], v[{s+4}:{s+5}], v[{s+6}:{s+7}]")
        A(f"    v_pk_add_f32 v[{s}:{s+1}], v[{s}:{s+1}], v[{s+4}:{s+5}]")
        A(f"    v_add_f32 v{s}, v{s}, v{s+1}")
        for ror in (8, 4, 2, 1):
            A("    s_nop 1"); A(dpp(s, ror))
    A(f"    v_mul_f32 v{s}, 0xbb000000, v{s}")
    sub = lambda p: f"    v_pk_add_f32 v[{f+2*p}:{f+2*p+1}], v[{f+2*p}:{f+2*p+1}], v[{s}:{s+1}] op_sel_hi:[1,0]"
    def sq(p):
        c = s + 2 + 2 * (p & 1); o = f + 2 * p
        if p < 2: return f"    v_pk_mul_f32 v[{c}:{c+1}], v[{o}:{o+1}], v[{o}:{o+1}]"
        return f"    v_pk_fma_f32 v[{c}:{c+1}], v[{o}:{o+1}], v[{o}:{o+1}], v[{c}:{c+1}]"
    A(sub(0)); A(sub(1))
    for p in range(16):
        if p + 2 < 16: A(sub(p + 2))
        A(sq(p))
    A(f"    v_pk_add_f32 v[{s+2}:{s+3}], v[{s+2}:{s+3}], v[{s+4}:{s+5}]")
    A(f"    v_add_f32 v{s+2}, v{s+2}, v{s+3}")
    A(f"    v_mov_b32 v{s+3}, 0x3727c5ac               ; eps = 1e-5")
    A("    s_nop 0"); A(dpp(s + 2, 8))
    for ror in (4, 2, 1):
        A("    s_nop 1"); A(dpp(s + 2, ror))
    A(f"    v_fmac_f32 v{s+3}, 0x3b000000, v{s+2}")
    A(f"    v_rsq_f32 v{s+2}, v{s+3}")
    if gbfirst: A("    s_nop 0")
    else: wait("b")
    A(f"    v_mul_f32 v4, v4, v{s+2}")
    hold = bool(late or n2)
    def store(k, pol):
        A(f"    global_store_dwordx4 v1, v[{8+4*k}:{11+4*k}], s[10:11] offset:{256*k} {pol}")
    for k in range(4):
        for q in range(4):
            o = f + 8 * k + 2 * q
            A(f"    v_pk_fma_f32 v[{o}:{o+1}], v[{o}:{o+1}], v[4:5], v[4:5] op_sel:[0,0,1] op_sel_hi:[1,0,1]")
        for q in range(4):
            o = f + 8 * k + 2 * q
            A(f"    v_cvt_pk_bf16_f32 v{8+4*k+q}, v{o}, v{o+1}")
        if not hold: store(k, st)
    if hold:
        if late:
            A("    s_cbranch_scc0 L_late")
            A("    s_barrier")
            A("L_late:")
        if n2:
            A(f"    s_cmpk_ge_u32 s14, {(waves-n2)*64}")
            A("    s_cbranch_scc1 L_st2")
        for k in range(4): store(k, st)
        if n2:
            A("    s_endpgm")
            A("L_st2:")
            for k in range(4): store(k, st2)
    A("L_end:")
    A("    s_endpgm")
    nv = 64
    A('.section .rodata,"a"')
    A(".p2align 6")
    A(".amdhsa_kernel standalone__instancenorm__sampling_kernel")
    A(f"  .amdhsa_next_free_vgpr {nv}")
    A(f"  .amdhsa_next_free_sgpr {16 if xmap < 100 else 24}")
    A(f"  .amdhsa_accum_offset {(nv+3)//4*4}")
    A("  .amdhsa_group_segment_fixed_size 0")
    A("  .amdhsa_kernarg_size 48")
    A("  .amdhsa_user_sgpr_count 2")
    A("  .amdhsa_user_sgpr_kernarg_segment_ptr 1")
    A("  .amdhsa_system_sgpr_workgroup_id_x 1")
    A("  .amdhsa_float_denorm_mode_32 3")
    A(".end_amdhsa_kernel")
    return "\n".join(L) + "\n"

if __name__ == "__main__":
    ap = argparse.ArgumentParser()
    for n, d in dict(block=1024, late=9, prio=0, n2=0, xmap=1, touch=0, gbfirst=0, dot=1, lds=0, align=12, skip=0, skippar=1, trim=1).items():
        ap.add_argument("--" + n, type=int, default=d)
    for n, d in dict(ld="nt", st="nt", st2="").items():
        ap.add_argument("--" + n, default=d)
    ap.add_argument("-o", default="-")
    a = vars(ap.parse_args())
    o = a.pop("o")
    txt = gen(**a)
    if o == "-": sys.stdout.write(txt)
    else: open(o, "w").write(txt)
```

```python
import sys, argparse, math

HDR = """; Kernarg layout for this problem (48 bytes, ptrs only, base s[0:1]):
"""

def gen(block=1024, late=9, prio=0, ld="nt", st="nt", st2="", n2=0, xmap=1, touch=0, gbfirst=0, dot=1, lds=0, align=12, skip=0, skippar=1, trim=1, mimic=1):
    waves = block // 64
    rows_per_block = 4 * waves
    grid = 16384 // rows_per_block
    lg = int(math.log2(rows_per_block))
    L = []
    A = L.append
    A(HDR + f"; @launch grid=({grid},1,1) block=({block},1,1) lds={lds}")
    A('.amdgcn_target "amdgcn-amd-amdhsa--gfx950"')
    A(".text")
    A(".globl standalone__instancenorm__sampling_kernel")
    if align != 8:
        A(f".p2align {align}")
    A(".p2align 8")
    A(".type standalone__instancenorm__sampling_kernel,@function")
    A("standalone__instancenorm__sampling_kernel:")
    A("    s_load_dwordx8 s[4:11], s[0:1], 0          ; s[4:5]=x s[6:7]=g s[8:9]=b s[10:11]=out")
    if prio:
        A(f"    s_setprio {prio}")
    if xmap >= 10:
        A("    s_lshr_b32 s3, s2, 3")
        A(f"    s_cmp_ge_u32 s3, {grid//8}")
        A("    s_cbranch_scc1 L_end")
    elif xmap == 1:
        A("    s_lshr_b32 s3, s2, 3")
        if grid // 8 <= 64:
            A(f"    s_cmp_ge_u32 s3, {grid//8}")
        else:
            A(f"    s_cmpk_ge_u32 s3, {grid//8}")
        A("    s_cbranch_scc1 L_end")
        A("    s_and_b32 s12, s2, 7")
        A(f"    s_lshl_b32 s12, s12, {11-lg}")
        A("    s_or_b32 s3, s3, s12")
    else:
        A(f"    s_cmpk_ge_u32 s2, {grid}")
        A("    s_cbranch_scc1 L_end")
        A("    s_mov_b32 s3, s2")
    if xmap >= 100:
        A("    v_readfirstlane_b32 s14, v0")
        A("    s_lshr_b32 s15, s14, 6                     ; w")
        A("    s_and_b32 s13, s15, 1                      ; a12")
        A("    s_lshr_b32 s12, s15, 1")
        A("    s_lshl_b32 s12, s12, 2                     ; a14-16")
        A("    s_or_b32 s13, s13, s12")
        A("    s_lshr_b32 s12, s2, 2                      ; side")
        if xmap == 101:
            A("    s_lshr_b32 s16, s15, 1")
            A("    s_lshr_b32 s17, s15, 2")
            A("    s_and_b32 s16, s16, s17")
            A("    s_xor_b32 s12, s12, s16")
        A("    s_lshr_b32 s15, s3, 4                      ; a21")
        A("    s_xor_b32 s12, s12, s15")
        A("    s_and_b32 s12, s12, 1")
        A("    s_lshl_b32 s12, s12, 1")
        A("    s_or_b32 s13, s13, s12")
        A("    s_lshl_b32 s3, s3, 5")
        A("    s_or_b32 s3, s3, s13")
        A("    s_and_b32 s12, s2, 3")
        A("    s_lshl_b32 s12, s12, 10")
        A("    s_or_b32 s3, s3, s12")
        A("    v_bfe_u32 v2, v0, 4, 2")
        A("    v_lshl_add_u32 v2, s3, 2, v2")
    elif xmap >= 10:
        nlo = (xmap // 10) - 1
        swz = xmap % 10
        A("    v_readfirstlane_b32 s14, v0")
        A("    s_lshr_b32 s15, s14, 6                     ; w")
        if swz == 1:
            A("    s_xor_b32 s15, s15, s3")
            A("    s_and_b32 s15, s15, 15")
        if swz == 2:
            A("    s_xor_b32 s3, s3, s15")
        if swz == 3:
            A("    s_lshr_b32 s13, s3, 1")
            A("    s_xor_b32 s15, s15, s13")
        if swz == 4:
            A("    s_lshr_b32 s13, s2, 1")
            A("    s_and_b32 s13, s13, 2")
            A("    s_xor_b32 s15, s15, s13")
        if swz == 5:
            A("    s_lshl_b32 s13, s2, 1")
            A("    s_and_b32 s13, s13, 2")
            A("    s_xor_b32 s15, s15, s13")
        A(f"    s_and_b32 s13, s15, {(1<<nlo)-1}")
        A(f"    s_lshl_b32 s3, s3, {nlo}")
        A("    s_or_b32 s3, s3, s13")
        A(f"    s_lshr_b32 s15, s15, {nlo}")
        A(f"    s_lshl_b32 s15, s15, {nlo+5}")
        A("    s_or_b32 s3, s3, s15")
        A("    s_and_b32 s12, s2, 7")
        A("    s_lshl_b32 s12, s12, 9")
        A("    s_or_b32 s3, s3, s12")
        A("    v_bfe_u32 v2, v0, 4, 2")
        A("    v_lshl_add_u32 v2, s3, 2, v2")
    else:
        A("    v_lshrrev_b32 v2, 4, v0")
        A(f"    v_lshl_add_u32 v2, s3, {lg}, v2")
    A("    v_and_b32 v1, 15, v0")
    A("    v_lshlrev_b32 v1, 4, v1")
    A("    v_lshl_add_u32 v1, v2, 10, v1")
    def setup1():
        A("    v_and_b32 v2, 0x1ff, v2                    ; channel")
        A("    v_lshlrev_b32 v2, 1, v2")
        A("    v_mov_b64 v[4:5], 0")
    def setup2():
        if late or n2:
            A("    v_readfirstlane_b32 s14, v0")
        if dot:
            A("    v_mov_b64 v[56:57], 0")
            A("    s_mov_b32 s13, 0x3f803f80                  ; bf16 {1.0, 1.0}")
        A("    s_mov_b32 s12, 0xffff0000")
    if not trim or gbfirst: setup1()
    if not trim or skip: setup2()
    if skip:
        A("    s_and_b32 s15, s2, 1")
        A(f"    s_cmp_eq_u32 s15, {skippar}")
        A(f"    s_movk_i32 s15, {(waves-skip)*64}")
        A("    s_cselect_b32 s15, s15, -1")
        A("    s_cmp_ge_u32 s14, s15")
        A("    s_cbranch_scc1 L_end")
    A("    s_waitcnt lgkmcnt(0)")
    order = []
    def gb():
        A("    global_load_short_d16_hi v4, v2, s[6:7]")
        A("    global_load_short_d16_hi v5, v2, s[8:9]")
        order.extend(["g", "b"])
    if gbfirst: gb()
    for k in range(4):
        A(f"    global_load_dwordx4 v[{8+4*k}:{11+4*k}], v1, s[4:5] offset:{256*k} {ld}")
        order.append(k)
    if trim and not gbfirst: setup1()
    if not gbfirst: gb()
    if trim and not skip: setup2()
    if touch:
        A(f"    s_lshl_b32 s3, s3, {lg+10}")
        A("    v_mov_b32 v3, s3")
        A("    global_load_dword v3, v3, s[10:11]")
        order.append("t")
    if prio:
        A("    s_setprio 0")
    if late:
        A(f"    s_cmpk_lt_u32 s14, {(waves-late)*64}")
        A("    s_cbranch_scc1 L_early")
        A("    s_barrier")
        A("L_early:")
    def wait(tag):
        A(f"    s_waitcnt vmcnt({len(order)-1-order.index(tag)})")
    f = 24; s = 56
    def unp(k, q):
        r = 8 + 4 * k + q; o = f + 8 * k + 2 * q
        return [f"    v_lshlrev_b32 v{o}, 16, v{r}", f"    v_and_b32 v{o+1}, s12, v{r}"]
    dpp = lambda reg, ror: f"    v_add_f32_dpp v{reg}, v{reg}, v{reg} row_ror:{ror} row_mask:0xf bank_mask:0xf"
    if dot:
        for k in range(4):
            wait(k)
            for q in range(4):
                A(f"    v_dot2c_f32_bf16 v{s+(q&1)}, s13, v{8+4*k+q}")
            if k < 3:
                for q in range(4):
                    L.extend(unp(k, q))
        fill = sum([unp(3, q) for q in range(4)], [])
        L.extend(fill[0:2]); A("    s_nop 0")
        A(f"    v_add_f32 v{s}, v{s}, v{s+1}")
        L.extend(fill[2:4]); A(dpp(s, 8))
        L.extend(fill[4:6]); A(dpp(s, 4))
        L.extend(fill[6:8]); A(dpp(s, 2))
        A("    s_nop 1"); A(dpp(s, 1))
    else:
        for k in range(4):
            wait(k)
            for q in range(4):
                L.extend(unp(k, q))
            o = f + 8 * k
            A(f"    v_pk_add_f32 v[{s+2*k}:{s+2*k+1}], v[{o}:{o+1}], v[{o+2}:{o+3}]")
            A(f"    v_pk_add_f32 v[{6}:{7}], v[{o+4}:{o+5}], v[{o+6}:{o+7}]")
            A(f"    v_pk_add_f32 v[{s+2*k}:{s+2*k+1}], v[{s+2*k}:{s+2*k+1}], v[{6}:{7}]")
        A(f"    v_pk_add_f32 v[{s}:{s+1}], v[{s}:{s+1}], v[{s+2}:{s+3}]")
        A(f"    v_pk_add_f32 v[{s+4}:{s+5}], v[{s+4}:{s+5}], v[{s+6}:{s+7}]")
        A(f"    v_pk_add_f32 v[{s}:{s+1}], v[{s}:{s+1}], v[{s+4}:{s+5}]")
        A(f"    v_add_f32 v{s}, v{s}, v{s+1}")
        for ror in (8, 4, 2, 1):
            A("    s_nop 1"); A(dpp(s, ror))
    A(f"    v_mul_f32 v{s}, 0xbb000000, v{s}")
    if mimic:
        A(f"    v_cvt_pk_bf16_f32 v{s}, 0, v{s}")
    sub = lambda p: f"    v_pk_add_f32 v[{f+2*p}:{f+2*p+1}], v[{f+2*p}:{f+2*p+1}], v[{s}:{s+1}] op_sel_hi:[1,0]"
    def sq(p):
        c = s + 2 + 2 * (p & 1); o = f + 2 * p
        if p < 2: return f"    v_pk_mul_f32 v[{c}:{c+1}], v[{o}:{o+1}], v[{o}:{o+1}]"
        return f"    v_pk_fma_f32 v[{c}:{c+1}], v[{o}:{o+1}], v[{o}:{o+1}], v[{c}:{c+1}]"
    A(sub(0)); A(sub(1))
    for p in range(16):
        if p + 2 < 16: A(sub(p + 2))
        A(sq(p))
    A(f"    v_pk_add_f32 v[{s+2}:{s+3}], v[{s+2}:{s+3}], v[{s+4}:{s+5}]")
    A(f"    v_add_f32 v{s+2}, v{s+2}, v{s+3}")
    if mimic:
        for ror in (8, 4, 2, 1):
            A("    s_nop 1"); A(dpp(s + 2, ror))
        A(f"    v_mul_f32 v{s+2}, 0x3b000000, v{s+2}")
        A(f"    v_cvt_pk_bf16_f32 v{s+2}, 0, v{s+2}")
        A(f"    v_add_f32 v{s+2}, 0x3727c5ac, v{s+2}        ; + 1e-5")
        A(f"    v_cvt_pk_bf16_f32 v{s+2}, 0, v{s+2}")
        A(f"    v_sqrt_f32 v{s+2}, v{s+2}")
        A("    s_nop 0")
        A(f"    v_cvt_pk_bf16_f32 v{s+2}, 0, v{s+2}")
        A(f"    v_rcp_f32 v{s+2}, v{s+2}")
    else:
        A(f"    v_mov_b32 v{s+3}, 0x3727c5ac               ; eps = 1e-5")
        A("    s_nop 0"); A(dpp(s + 2, 8))
        for ror in (4, 2, 1):
            A("    s_nop 1"); A(dpp(s + 2, ror))
        A(f"    v_fmac_f32 v{s+3}, 0x3b000000, v{s+2}")
        A(f"    v_rsq_f32 v{s+2}, v{s+3}")
    if gbfirst: A("    s_nop 0")
    else: wait("b")
    A(f"    v_mul_f32 v4, v4, v{s+2}")
    hold = bool(late or n2)
    def store(k, pol):
        A(f"    global_store_dwordx4 v1, v[{8+4*k}:{11+4*k}], s[10:11] offset:{256*k} {pol}")
    for k in range(4):
        for q in range(4):
            o = f + 8 * k + 2 * q
            A(f"    v_pk_fma_f32 v[{o}:{o+1}], v[{o}:{o+1}], v[4:5], v[4:5] op_sel:[0,0,1] op_sel_hi:[1,0,1]")
        for q in range(4):
            o = f + 8 * k + 2 * q
            A(f"    v_cvt_pk_bf16_f32 v{8+4*k+q}, v{o}, v{o+1}")
        if not hold: store(k, st)
    if hold:
        if late:
            A("    s_cbranch_scc0 L_late")
            A("    s_barrier")
            A("L_late:")
        if n2:
            A(f"    s_cmpk_ge_u32 s14, {(waves-n2)*64}")
            A("    s_cbranch_scc1 L_st2")
        for k in range(4): store(k, st)
        if n2:
            A("    s_endpgm")
            A("L_st2:")
            for k in range(4): store(k, st2)
    A("L_end:")
    A("    s_endpgm")
    nv = 64
    A('.section .rodata,"a"')
    A(".p2align 6")
    A(".amdhsa_kernel standalone__instancenorm__sampling_kernel")
    A(f"  .amdhsa_next_free_vgpr {nv}")
    A(f"  .amdhsa_next_free_sgpr {16 if xmap < 100 else 24}")
    A(f"  .amdhsa_accum_offset {(nv+3)//4*4}")
    A("  .amdhsa_group_segment_fixed_size 0")
    A("  .amdhsa_kernarg_size 48")
    A("  .amdhsa_user_sgpr_count 2")
    A("  .amdhsa_user_sgpr_kernarg_segment_ptr 1")
    A("  .amdhsa_system_sgpr_workgroup_id_x 1")
    A("  .amdhsa_float_denorm_mode_32 3")
    A(".end_amdhsa_kernel")
    return "\n".join(L) + "\n"

if __name__ == "__main__":
    ap = argparse.ArgumentParser()
    for n, d in dict(block=1024, late=9, prio=0, n2=0, xmap=1, touch=0, gbfirst=0, dot=1, lds=0, align=12, skip=0, skippar=1, trim=1, mimic=1).items():
        ap.add_argument("--" + n, type=int, default=d)
    for n, d in dict(ld="nt", st="nt", st2="").items():
        ap.add_argument("--" + n, default=d)
    ap.add_argument("-o", default="-")
    a = vars(ap.parse_args())
    o = a.pop("o")
    txt = gen(**a)
    if o == "-": sys.stdout.write(txt)
    else: open(o, "w").write(txt)
```
